```python
import torch

def _softmax(x, axis=-1):
    return torch.softmax(x, dim=axis)
def _gelu(x):
    return torch.nn.functional.gelu(x, approximate="tanh")
def _silu(x):
    return torch.nn.functional.silu(x)
def _sigmoid(x):
    return torch.sigmoid(x)
def _layernorm(x, axis=-1, eps=1e-5):
    m = x.mean(dim=axis, keepdim=True)
    v = x.var(dim=axis, keepdim=True, unbiased=False)
    return (x - m) / torch.sqrt(v + eps)
def _scatter_add(tgt, idx, src, axis=0):
    return tgt.clone().index_add_(axis, idx, src)
def _segment_sum(src, seg, n):
    out = torch.zeros((n,) + src.shape[1:], dtype=src.dtype)
    return out.index_add_(0, seg, src)
def _pad(x, pw):
    flat = tuple(v for pair in reversed(pw) for v in pair)
    return torch.nn.functional.pad(x, flat)

kernel_name = 'concat_heads__mha_block__softmax_full_mha__prompt'

def setup_inputs():

    _w = (lambda a: (lambda t: t.to(torch.bfloat16) if t.is_floating_point() else t)(torch.as_tensor(a)))
    def _A_setup():
        B, S, D, H = 1, 2048, 448, 16
        return {
            "x": _w((lambda *s: torch.randn(*s, dtype=torch.bfloat16) * 0.2)(B, S, D)),
            "wqkv": _w((lambda *s: torch.randn(*s, dtype=torch.bfloat16) * 0.2)(D, 3 * D)),
            "wo": _w((lambda *s: torch.randn(*s, dtype=torch.bfloat16) * 0.05)(D, D)),
        }
    _A_in = _A_setup()

    def _B_setup():
        B, S, D = 1, 2048, 448
        return {
            "x": _w((lambda *s: torch.randn(*s, dtype=torch.bfloat16) * 0.2)(B, S, D)),
            "wqkv": _w((lambda *s: torch.randn(*s, dtype=torch.bfloat16) * 0.2)(D, 3 * D)),
            "wo": _w((lambda *s: torch.randn(*s, dtype=torch.bfloat16) * 0.05)(D, D)),
        }
    _B_in = _B_setup()

    return {
        "A_x": _A_in["x"],
        "A_wqkv": _A_in["wqkv"],
        "A_wo": _A_in["wo"],
        "B_x": _B_in["x"],
        "B_wqkv": _B_in["wqkv"],
        "B_wo": _B_in["wo"],
    }

def reference(A_x, A_wqkv, A_wo, B_x, B_wqkv, B_wo):
    def _A_ref(x, wqkv, wo):
        B, S, D = x.shape
        H = 16
        Dh = D // H
        qkv = (lambda x, *d: x.permute(*d))((x @ wqkv).reshape(B, S, 3, H, Dh), 2, 0, 3, 1, 4)
        q, k, v = qkv[0], qkv[1], qkv[2]
        scores = torch.einsum("bhqd,bhkd->bhqk", q, k) * (Dh ** -0.5)
        p = _softmax(scores, axis=-1)
        o = torch.einsum("bhqk,bhkd->bhqd", p, v)
        return (lambda x, *d: x.permute(*d))(o, 0, 2, 1, 3).reshape(B, S, D) @ wo

    def _B_ref(x, wqkv, wo):
        B, S, D = x.shape
        H = 16; Dh = D // H
        qkv = (lambda x, *d: x.permute(*d))((x @ wqkv).reshape(B, S, 3, H, Dh), 2, 0, 3, 1, 4)
        q, k, v = qkv[0], qkv[1], qkv[2]
        scale = Dh ** -0.5
        scores = torch.einsum("bhqd,bhkd->bhqk", q, k) * scale
        p = _softmax(scores, axis=-1)
        o = torch.einsum("bhqk,bhkd->bhqd", p, v)
        return (lambda x, *d: x.permute(*d))(o, 0, 2, 1, 3).reshape(B, S, D) @ wo

    a = _A_ref(A_x, A_wqkv, A_wo)
    b = _B_ref(B_x, B_wqkv, B_wo)
    return torch.concatenate([a, b], axis=-1)
```

```python
import sys
L=[]
def e(s): L.append(s)
NAME="concat_heads__mha_block__softmax_full_mha__prompt"
hdr=open('cdna_kernels/%s.s.ref'%NAME).read().split('\n')
for h in hdr:
    if h.startswith('; Override') : break
    e(h)
e("; @launch kernel=qkv_kernel grid=(672,1,1) block=(256,1,1) lds=57344")
e("; @launch kernel=attn_kernel grid=(512,1,1) block=(256,1,1) lds=32768")
e("; @launch kernel=oproj_kernel grid=(224,1,1) block=(256,1,1) lds=57344")
e('.amdgcn_target "amdgcn-amd-amdhsa--gfx950"')
e('.text')
MB=1<<20
QOFF,KOFF,VOFF,OOFF=0,4*MB,8*MB,12*MB
C_SCALE=(28**-0.5)*1.4426950408889634
import struct
def f2u(f): return struct.unpack('<I',struct.pack('<f',f))[0]

def gemm(name, ntiles, ldw, kind):
    nwg=2*16*ntiles
    e(f".globl {name}\n.p2align 8\n.type {name},@function\n{name}:")
    e(f"s_cmp_ge_u32 s2, {nwg}\ns_cbranch_scc1 {name}_end")
    e("s_load_dwordx8 s[4:11], s[0:1], 0")
    e("s_load_dwordx8 s[12:19], s[0:1], 32")
    e("s_load_dwordx2 s[20:21], s[0:1], 64")
    magic=(2**32+ntiles-1)//ntiles
    e(f"s_mov_b32 s22, {magic}\ns_mul_hi_u32 s23, s2, s22")
    e(f"s_mul_i32 s24, s23, {ntiles}\ns_sub_u32 s24, s2, s24")
    e("s_and_b32 s25, s23, 15\ns_lshr_b32 s26, s23, 4")
    e("v_lshrrev_b32 v1, 6, v0\nv_and_b32 v2, 63, v0\ns_nop 0\nv_readfirstlane_b32 s27, v1")
    e("s_waitcnt lgkmcnt(0)")
    e("s_cmp_eq_u32 s26, 0")
    if kind=='qkv':
        e("s_cselect_b32 s28, s4, s10\ns_cselect_b32 s29, s5, s11")
        e("s_cselect_b32 s30, s6, s12\ns_cselect_b32 s31, s7, s13")
    else:
        e("s_cselect_b32 s30, s8, s14\ns_cselect_b32 s31, s9, s15")
        e(f"s_mul_i32 s32, s26, {2048*448*2}\ns_add_u32 s32, s32, {OOFF}")
        e("s_add_u32 s28, s20, s32\ns_addc_u32 s29, s21, 0")
    e("s_lshl_b32 s33, s24, 6")
    e("s_mul_i32 s34, s27, 112")
    e("v_lshrrev_b32 v3, 3, v2\nv_add_u32 v3, s34, v3")
    e("v_and_b32 v4, 7, v2")
    e(f"s_mov_b32 s35, {ldw*2}\nv_mul_lo_u32 v5, v3, s35")
    e("s_lshl_b32 s36, s33, 1\nv_lshlrev_b32 v6, 4, v4\nv_add3_u32 v5, v5, v6, s36")
    e("v_lshrrev_b32 v6, 2, v4\nv_mul_u32_u24 v6, 28672, v6\nv_lshlrev_b32 v7, 6, v3\nv_and_b32 v8, 3, v2\nv_lshlrev_b32 v8, 4, v8\nv_add3_u32 v6, v6, v7, v8")
    WR=128
    for it in range(14):
        e(f"global_load_dwordx4 v[{WR+4*it}:{WR+4*it+3}], v5, s[30:31]")
        if it<13: e(f"v_add_u32 v5, {8*ldw*2}, v5")
    e("s_lshl_b32 s37, s25, 7\ns_lshl_b32 s38, s27, 5\ns_add_u32 s37, s37, s38")
    e("v_and_b32 v9, 31, v2\nv_add_u32 v10, s37, v9\nv_mul_u32_u24 v10, 896, v10\nv_lshrrev_b32 v11, 5, v2\nv_lshlrev_b32 v12, 4, v11\nv_add_u32 v10, v10, v12")
    for ks in range(28):
        e(f"global_load_dwordx4 v[{16+4*ks}:{16+4*ks+3}], v10, s[28:29] offset:{ks*32}")
    e("s_waitcnt vmcnt(28)")
    for it in range(14):
        e(f"ds_write_b128 v6, v[{WR+4*it}:{WR+4*it+3}] offset:{it*512}")
    e("v_lshrrev_b32 v13, 4, v2\nv_lshrrev_b32 v14, 1, v13\nv_lshlrev_b32 v14, 9, v14")
    e("v_and_b32 v15, 15, v2\nv_lshrrev_b32 v15, 2, v15\nv_lshlrev_b32 v15, 6, v15\nv_add_u32 v14, v14, v15")
    e("v_and_b32 v13, 1, v13\nv_lshlrev_b32 v13, 5, v13\nv_and_b32 v15, 3, v2\nv_lshlrev_b32 v15, 3, v15\nv_add3_u32 v14, v14, v13, v15")
    e("s_waitcnt lgkmcnt(0)\ns_barrier")
    ACC=(192,208); WF=(224,240)
    for a in ACC:
        for i in range(16): e(f"v_mov_b32 v{a+i}, 0")
    def rd(ks):
        p=WF[ks&1]
        for j in range(2):
            for hf in range(2):
                e(f"ds_read_b64_tr_b16 v[{p+4*j+2*hf}:{p+4*j+2*hf+1}], v14 offset:{j*28672+ks*1024+hf*256}")
    def loop(swap):
        rd(0)
        for ks in range(28):
            if ks<27: rd(ks+1)
            e(f"s_waitcnt vmcnt({27-ks}) lgkmcnt({4 if ks<27 else 0})")
            p=WF[ks&1]; x=16+4*ks
            for j in range(2):
                a=ACC[j]
                if swap: e(f"v_mfma_f32_32x32x16_bf16 v[{a}:{a+15}], v[{p+4*j}:{p+4*j+3}], v[{x}:{x+3}], v[{a}:{a+15}]")
                else:    e(f"v_mfma_f32_32x32x16_bf16 v[{a}:{a+15}], v[{x}:{x+3}], v[{p+4*j}:{p+4*j+3}], v[{a}:{a+15}]")
        e("s_nop 15\ns_nop 3")
    if kind=='out':
        loop(True)
        e("v_add_u32 v16, s37, v9\nv_mul_u32_u24 v16, 1792, v16")
        e(f"s_mul_i32 s39, s26, 896\ns_add_u32 s39, s39, s36\nv_lshlrev_b32 v17, 3, v11\nv_add3_u32 v16, v16, v17, s39")
        for j in range(2):
            for g in range(4):
                a=ACC[j]+4*g
                e(f"v_cvt_pk_bf16_f32 v20, v{a}, v{a+1}\nv_cvt_pk_bf16_f32 v21, v{a+2}, v{a+3}")
                e(f"global_store_dwordx2 v16, v[20:21], s[16:17] offset:{j*64+g*16}")
                e("s_nop 1")
    else:
        e(f"s_cmp_ge_u32 s24, 14\ns_cbranch_scc1 {name}_v")
        loop(True)
        e("s_cmp_ge_u32 s24, 7\ns_cselect_b32 s40, 448, 0")
        e(f"s_cselect_b32 s41, {KOFF}, {QOFF}\ns_cselect_b32 s42, 1.0, {f2u(C_SCALE)}\ns_sub_u32 s40, s33, s40")
        e(f"s_lshl_b32 s43, s26, 21\ns_add_u32 s41, s41, s43\ns_lshr_b32 s43, s37, 5\ns_lshl_b32 s43, s43, 11\ns_add_u32 s41, s41, s43")
        e("s_add_u32 s44, s20, s41\ns_addc_u32 s45, s21, 0")
        e("v_lshlrev_b32 v16, 4, v9")
        e("v_lshlrev_b32 v17, 2, v11\nv_add_u32 v17, s40, v17")
        e("v_mov_b32 v26, 0\nv_mov_b32 v27, 0")
        for j in range(2):
            for g in range(4):
                a=ACC[j]+4*g
                e(f"v_add_u32 v18, {32*j+8*g}, v17\nv_mul_u32_u24 v19, 2341, v18\nv_lshrrev_b32 v19, 16, v19")
                e("v_mul_u32_u24 v20, 28, v19\nv_sub_u32 v20, v18, v20")
                e("v_lshlrev_b32 v21, 17, v19\nv_lshrrev_b32 v22, 3, v20\nv_lshlrev_b32 v22, 9, v22\nv_and_b32 v23, 7, v20\nv_lshlrev_b32 v23, 1, v23")
                e("v_add3_u32 v21, v21, v22, v23\nv_add_u32 v21, v21, v16")
                for i in range(4): e(f"v_mul_f32 v{a+i}, s42, v{a+i}")
                e(f"v_cvt_pk_bf16_f32 v24, v{a}, v{a+1}\nv_cvt_pk_bf16_f32 v25, v{a+2}, v{a+3}")
                e("v_cmp_eq_u32 vcc, 24, v20\ns_and_saveexec_b64 s[46:47], vcc")
                e("global_store_dwordx4 v21, v[24:27], s[44:45]")
                e("s_andn2_b64 exec, s[46:47], exec")
                e("global_store_dwordx2 v21, v[24:25], s[44:45]")
                e("s_mov_b64 exec, s[46:47]\ns_nop 1")
        e(f"s_branch {name}_end")
        e(f"{name}_v:")
        loop(False)
        e(f"s_lshl_b32 s43, s26, 21\ns_add_u32 s41, s43, {VOFF}\ns_lshr_b32 s43, s37, 5\ns_lshl_b32 s43, s43, 11\ns_add_u32 s41, s41, s43")
        e("s_add_u32 s44, s20, s41\ns_addc_u32 s45, s21, 0")
        e("s_sub_u32 s40, s33, 896")
        for j in range(2):
            e(f"v_add_u32 v18, s40, v9\nv_add_u32 v18, {32*j}, v18\nv_mul_u32_u24 v19, 2341, v18\nv_lshrrev_b32 v19, 16, v19")
            e("v_mul_u32_u24 v20, 28, v19\nv_sub_u32 v20, v18, v20")
            e("v_lshlrev_b32 v21, 17, v19\nv_lshlrev_b32 v22, 4, v20\nv_lshlrev_b32 v23, 9, v11\nv_add3_u32 v21, v21, v22, v23")
            for gp in range(2):
                a=ACC[j]+8*gp
                for i in range(4): e(f"v_cvt_pk_bf16_f32 v{24+i}, v{a+2*i}, v{a+2*i+1}")
                e(f"global_store_dwordx4 v21, v[24:27], s[44:45] offset:{gp*1024}")
                e("s_nop 1")
        e("s_sub_u32 s48, s24, 14\ns_mul_i32 s49, s27, 7\ns_add_u32 s48, s48, s49\ns_cmp_ge_u32 s48, 16")
        e(f"s_cbranch_scc1 {name}_end")
        e(f"s_lshl_b32 s43, s26, 21\ns_add_u32 s41, s43, {VOFF}\ns_lshl_b32 s43, s48, 17\ns_add_u32 s41, s41, s43\ns_lshl_b32 s43, s25, 13\ns_add_u32 s41, s41, s43")
        e("s_add_u32 s44, s20, s41\ns_addc_u32 s45, s21, 0")
        e("v_lshrrev_b32 v18, 3, v2\nv_lshlrev_b32 v18, 10, v18")
        e("v_lshrrev_b32 v19, 2, v2\nv_and_b32 v19, 1, v19\nv_lshlrev_b32 v19, 9, v19")
        e("v_and_b32 v20, 3, v2\nv_add_u32 v21, 28, v20\nv_lshlrev_b32 v21, 4, v21\nv_add3_u32 v18, v18, v19, v21")
        e("v_cmp_eq_u32 vcc, 0, v20\nv_mov_b32 v22, 0x3f803f80\ns_nop 1\nv_cndmask_b32 v24, 0, v22, vcc\nv_mov_b32 v25, v24\nv_mov_b32 v26, v24\nv_mov_b32 v27, v24")
        e("global_store_dwordx4 v18, v[24:27], s[44:45]")
    e(f"{name}_end:\ns_endpgm")

def attn():
    name="attn_kernel"
    e(f".globl {name}\n.p2align 8\n.type {name},@function\n{name}:")
    e(f"s_cmp_ge_u32 s2, 512\ns_cbranch_scc1 {name}_end")
    e("s_load_dwordx2 s[20:21], s[0:1], 64")
    e("s_and_b32 s3, s2, 7\ns_lshr_b32 s4, s2, 3\ns_and_b32 s5, s4, 3\ns_lshl_b32 s3, s3, 2\ns_add_u32 s3, s3, s5\ns_lshr_b32 s4, s4, 2")
    e("v_lshrrev_b32 v1, 6, v0\nv_and_b32 v2, 63, v0\ns_nop 0\nv_readfirstlane_b32 s5, v1")
    e("s_lshl_b32 s6, s4, 2\ns_add_u32 s6, s6, s5")
    e("s_lshl_b32 s7, s3, 17")
    e("s_waitcnt lgkmcnt(0)")
    e("s_lshl_b32 s8, s6, 11\ns_add_u32 s8, s8, s7\ns_add_u32 s10, s20, s8\ns_addc_u32 s11, s21, 0")
    e(f"s_add_u32 s8, s7, {KOFF}\ns_add_u32 s12, s20, s8\ns_addc_u32 s13, s21, 0")
    e(f"s_add_u32 s8, s7, {VOFF}\ns_add_u32 s14, s20, s8\ns_addc_u32 s15, s21, 0")
    e("v_lshlrev_b32 v3, 4, v2")
    e("global_load_dwordx4 v[8:11], v3, s[10:11]\nglobal_load_dwordx4 v[12:15], v3, s[10:11] offset:1024")
    e("s_lshl_b32 s16, s5, 11\nv_add_u32 v4, s16, v3")
    S=(32,48); O=64; NM=80; KF=(96,104); VF=(112,120); P=16
    def dma(buf):
        e(f"s_add_u32 s17, {buf}, s16\ns_mov_b32 m0, s17\ns_nop 0")
        e("global_load_lds_dwordx4 v4, s[12:13]\nglobal_load_lds_dwordx4 v4, s[12:13] offset:1024")
        e("s_add_u32 s17, s17, 8192\ns_mov_b32 m0, s17\ns_nop 0")
        e("global_load_lds_dwordx4 v4, s[14:15]\nglobal_load_lds_dwordx4 v4, s[14:15] offset:1024")
        e("v_add_u32 v4, 8192, v4")
    e("s_mov_b32 s18, 0\ns_mov_b32 s19, 16384")
    dma("s18"); dma("s19")
    for i in range(16): e(f"v_mov_b32 v{O+i}, 0\nv_mov_b32 v{NM+i}, 0")
    e("v_mov_b32 v5, 0xff800000\nv_mov_b32 v6, 0xff800000")
    e("s_waitcnt vmcnt(4)\ns_barrier")
    def rdK(t,p):
        for d in range(2): e(f"ds_read_b128 v[{KF[p]+4*d}:{KF[p]+4*d+3}], v3 offset:{t*2048+d*1024}")
    def rdV(t,p):
        for d in range(2): e(f"ds_read_b128 v[{VF[p]+4*d}:{VF[p]+4*d+3}], v3 offset:{8192+t*2048+d*1024}")
    def A(p):
        s=S[p];k=KF[p]
        e(f"v_mfma_f32_32x32x16_bf16 v[{s}:{s+15}], v[{k}:{k+3}], v[8:11], v[{NM}:{NM+15}]")
        e(f"v_mfma_f32_32x32x16_bf16 v[{s}:{s+15}], v[{k+4}:{k+7}], v[12:15], v[{s}:{s+15}]")
    rdK(0,0); rdV(0,0)
    e("s_waitcnt lgkmcnt(0)"); A(0)
    e("s_nop 15\ns_mov_b32 s22, 0")
    rare=[]
    def body(last,tag):
        for t in range(4):
            p=t&1; s=S[p]; nxt = not(last and t==3)
            if t==3 and not last:
                e("s_waitcnt vmcnt(0) lgkmcnt(0)\ns_barrier")
                e(f"s_cmp_ge_u32 s22, 14\ns_cbranch_scc1 {tag}_nodma")
                dma("s18")
                e(f"{tag}_nodma:")
                e("s_xor_b32 s18, s18, 16384\nv_xor_b32 v3, 16384, v3")
            if nxt: rdK((t+1)&3,p^1); rdV((t+1)&3,p^1)
            e(f"v_max3_f32 v7, v{s}, v{s+1}, v{s+2}")
            for i in range(3,15,2): e(f"v_max3_f32 v7, v7, v{s+i}, v{s+i+1}")
            e(f"v_max_f32 v7, v7, v{s+15}")
            e(f"v_cmp_gt_f32 vcc, v7, v5\ns_cbranch_vccnz {tag}_rare{t}\n{tag}_back{t}:")
            for i in range(8): e(f"v_exp_f32 v{s+i}, v{s+i}")
            if nxt:
                e("s_waitcnt lgkmcnt(2)"); A(p^1)
            for i in range(8,16): e(f"v_exp_f32 v{s+i}, v{s+i}")
            for i in range(8): e(f"v_cvt_pk_bf16_f32 v{P+i}, v{s+2*i}, v{s+2*i+1}")
            e("s_nop 1")
            if not nxt: e("s_waitcnt lgkmcnt(0)")
            v=VF[p]
            e(f"v_mfma_f32_32x32x16_bf16 v[{O}:{O+15}], v[{v}:{v+3}], v[{P}:{P+3}], v[{O}:{O+15}]")
            e(f"v_mfma_f32_32x32x16_bf16 v[{O}:{O+15}], v[{v+4}:{v+7}], v[{P+4}:{P+7}], v[{O}:{O+15}]")
            rare.append((tag,t,s))
    e("attn_loop:")
    body(False,"aL")
    e("s_add_u32 s22, s22, 1\ns_cmp_lt_u32 s22, 15\ns_cbranch_scc1 attn_loop")
    body(True,"aF")
    e("s_nop 15\ns_nop 3")
    e(f"v_mov_b32 v24, v{O+12}\nv_mov_b32 v25, v{O+12}\ns_nop 1\nv_permlane32_swap_b32 v24, v25\nv_rcp_f32 v25, v25\ns_nop 0")
    e("s_and_b32 s23, s3, 15\ns_lshr_b32 s24, s3, 4")
    e(f"s_mul_i32 s24, s24, {2048*448*2}\ns_mul_i32 s23, s23, 56\ns_add_u32 s24, s24, s23\ns_add_u32 s24, s24, {OOFF}\ns_add_u32 s26, s20, s24\ns_addc_u32 s27, s21, 0")
    e("s_lshl_b32 s25, s6, 5\nv_and_b32 v26, 31, v2\nv_add_u32 v26, s25, v26\nv_mul_u32_u24 v26, 896, v26\nv_lshrrev_b32 v27, 5, v2\nv_lshlrev_b32 v27, 3, v27\nv_add_u32 v26, v26, v27")
    for g in range(4):
        a=O+4*g
        for i in range(4): e(f"v_mul_f32 v{a+i}, v25, v{a+i}")
        e(f"v_cvt_pk_bf16_f32 v28, v{a}, v{a+1}\nv_cvt_pk_bf16_f32 v29, v{a+2}, v{a+3}")
        if g==3: e("s_mov_b64 exec, 0xffffffff")
        e(f"global_store_dwordx2 v26, v[28:29], s[26:27] offset:{g*16}\ns_nop 1")
    e(f"{name}_end:\ns_endpgm")
    for tag,t,s in rare:
        e(f"{tag}_rare{t}:\ns_nop 15")
        e("v_mov_b32 v24, v7\nv_mov_b32 v25, v7\ns_nop 1\nv_permlane32_swap_b32 v24, v25\nv_max_f32 v24, v24, v25\nv_max_f32 v24, v24, v6")
        e("v_mov_b32 v6, 0\nv_mov_b32 v5, 0x41000000\nv_max_f32 v25, 0, v24\nv_exp_f32 v25, -v25\ns_nop 0")
        for i in range(16): e(f"v_mul_f32 v{O+i}, v25, v{O+i}\nv_sub_f32 v{s+i}, v{s+i}, v24\nv_sub_f32 v{NM+i}, v{NM+i}, v24")
        e(f"s_nop 1\ns_branch {tag}_back{t}")

gemm("qkv_kernel",21,1344,'qkv')
attn()
gemm("oproj_kernel",7,448,'out')
e('.section .rodata,"a"')
for k,nv in (("qkv_kernel",256),("attn_kernel",128),("oproj_kernel",256)):
    e(f""".p2align 6
.amdhsa_kernel {k}
  .amdhsa_next_free_vgpr {nv}
  .amdhsa_next_free_sgpr 64
  .amdhsa_accum_offset {nv}
  .amdhsa_group_segment_fixed_size 0
  .amdhsa_kernarg_size 72
  .amdhsa_user_sgpr_count 2
  .amdhsa_user_sgpr_kernarg_segment_ptr 1
  .amdhsa_system_sgpr_workgroup_id_x 1
.end_amdhsa_kernel""")
open('cdna_kernels/%s.s'%NAME,'w').write('\n'.join(L)+'\n')
```

```python
import sys
L=[]
def e(s): L.append(s)
NAME="concat_heads__mha_block__softmax_full_mha__prompt"
hdr=open('cdna_kernels/%s.s.ref'%NAME).read().split('\n')
for h in hdr:
    if h.startswith('; Override') : break
    e(h)
e("; @launch kernel=qkv_kernel grid=(1344,1,1) block=(256,1,1) lds=115712")
e("; @launch kernel=attn_kernel grid=(512,1,1) block=(256,1,1) lds=32768")
e("; @launch kernel=oproj_kernel grid=(448,1,1) block=(256,1,1) lds=115712")
e('.amdgcn_target "amdgcn-amd-amdhsa--gfx950"')
e('.text')
MB=1<<20
QOFF,KOFF,VOFF,OOFF=0,4*MB,8*MB,12*MB
C_SCALE=(28**-0.5)*1.4426950408889634
import struct
def f2u(f): return struct.unpack('<I',struct.pack('<f',f))[0]

def gemm(name, ntiles, ldw, kind):
    nwg=2*32*ntiles
    e(f".globl {name}\n.p2align 8\n.type {name},@function\n{name}:")
    e(f"s_cmp_ge_u32 s2, {nwg}\ns_cbranch_scc1 {name}_end")
    e("s_load_dwordx8 s[4:11], s[0:1], 0")
    e("s_load_dwordx8 s[12:19], s[0:1], 32")
    e("s_load_dwordx2 s[20:21], s[0:1], 64")
    magic=(2**32+ntiles-1)//ntiles
    e(f"s_mov_b32 s22, {magic}\ns_mul_hi_u32 s23, s2, s22")
    e(f"s_mul_i32 s24, s23, {ntiles}\ns_sub_u32 s24, s2, s24")
    e("s_and_b32 s25, s23, 31\ns_lshr_b32 s26, s23, 5")
    e("v_lshrrev_b32 v1, 6, v0\nv_and_b32 v2, 63, v0\ns_nop 0\nv_readfirstlane_b32 s27, v1")
    e("s_waitcnt lgkmcnt(0)")
    e("s_cmp_eq_u32 s26, 0")
    if kind=='qkv':
        e("s_cselect_b32 s28, s4, s10\ns_cselect_b32 s29, s5, s11")
        e("s_cselect_b32 s30, s6, s12\ns_cselect_b32 s31, s7, s13")
    else:
        e("s_cselect_b32 s30, s8, s14\ns_cselect_b32 s31, s9, s15")
        e(f"s_mul_i32 s32, s26, {2048*448*2}\ns_add_u32 s32, s32, {OOFF}")
        e("s_add_u32 s28, s20, s32\ns_addc_u32 s29, s21, 0")
    e("s_lshl_b32 s33, s24, 6")
    e("s_mul_i32 s34, s27, 112")
    e("v_lshrrev_b32 v3, 3, v2\nv_add_u32 v3, s34, v3")
    e("v_and_b32 v4, 7, v2")
    e(f"s_mov_b32 s35, {ldw*2}\nv_mul_lo_u32 v5, v3, s35")
    e("s_lshl_b32 s36, s33, 1\nv_lshlrev_b32 v6, 4, v4\nv_add3_u32 v5, v5, v6, s36")
    e("v_lshrrev_b32 v6, 2, v4\nv_mul_u32_u24 v6, 28672, v6\nv_lshlrev_b32 v7, 6, v3\nv_and_b32 v8, 3, v2\nv_lshlrev_b32 v8, 4, v8\nv_add3_u32 v6, v6, v7, v8")
    WR=128
    for it in range(14):
        e(f"global_load_dwordx4 v[{WR+4*it}:{WR+4*it+3}], v5, s[30:31]")
        if it<13: e(f"v_add_u32 v5, {8*ldw*2}, v5")
    e("s_lshl_b32 s50, s25, 6\ns_and_b32 s38, s27, 1\ns_lshl_b32 s38, s38, 5\ns_add_u32 s37, s50, s38\ns_lshr_b32 s51, s27, 1")
    e("v_and_b32 v9, 31, v2\nv_lshrrev_b32 v11, 5, v2\nv_lshrrev_b32 v12, 2, v0\nv_and_b32 v13, 3, v0\nv_lshlrev_b32 v13, 4, v13")
    e("v_add_u32 v10, s50, v12\nv_mul_u32_u24 v10, 896, v10\nv_add_u32 v10, v10, v13\nv_mul_u32_u24 v12, 912, v12\nv_add_u32 v12, v12, v13\nv_add_u32 v12, 57344, v12")
    for it in range(14):
        e(f"global_load_dwordx4 v[{16+4*it}:{16+4*it+3}], v10, s[28:29] offset:{it*64}")
    e("v_add_u32 v10, s38, v9\nv_mul_u32_u24 v10, 912, v10\nv_lshlrev_b32 v13, 4, v11\nv_add3_u32 v10, v10, v13, 1\nv_add_u32 v10, 57343, v10")
    e("s_waitcnt vmcnt(0)")
    for it in range(14):
        e(f"ds_write_b128 v12, v[{16+4*it}:{16+4*it+3}] offset:{it*64}")
    for it in range(14):
        e(f"ds_write_b128 v6, v[{WR+4*it}:{WR+4*it+3}] offset:{it*512}")
    e("v_lshrrev_b32 v13, 4, v2\nv_lshrrev_b32 v14, 1, v13\nv_lshlrev_b32 v14, 9, v14")
    e("v_and_b32 v15, 15, v2\nv_lshrrev_b32 v15, 2, v15\nv_lshlrev_b32 v15, 6, v15\nv_add_u32 v14, v14, v15")
    e("v_and_b32 v13, 1, v13\nv_lshlrev_b32 v13, 5, v13\nv_and_b32 v15, 3, v2\nv_lshlrev_b32 v15, 3, v15\nv_add3_u32 v14, v14, v13, v15\ns_mul_i32 s52, s51, 28672\nv_add_u32 v14, s52, v14")
    e("s_waitcnt lgkmcnt(0)\ns_barrier\ns_lshl_b32 s53, s51, 5\ns_add_u32 s33, s33, s53\ns_lshl_b32 s36, s33, 1")
    ACC=(192,208); WF=(224,240)
    for a in ACC:
        for i in range(16): e(f"v_mov_b32 v{a+i}, 0")
    def rd(ks):
        p=WF[ks&1]
        for hf in range(2):
            e(f"ds_read_b64_tr_b16 v[{p+2*hf}:{p+2*hf+1}], v14 offset:{ks*1024+hf*256}")
        e(f"ds_read_b128 v[{p+4}:{p+7}], v10 offset:{ks*32}")
    def loop(swap):
        rd(0)
        for ks in range(28):
            if ks<27: rd(ks+1)
            e(f"s_waitcnt lgkmcnt({3 if ks<27 else 0})")
            p=WF[ks&1]; x=p+4
            for j in range(1):
                a=ACC[j]
                if swap: e(f"v_mfma_f32_32x32x16_bf16 v[{a}:{a+15}], v[{p+4*j}:{p+4*j+3}], v[{x}:{x+3}], v[{a}:{a+15}]")
                else:    e(f"v_mfma_f32_32x32x16_bf16 v[{a}:{a+15}], v[{x}:{x+3}], v[{p+4*j}:{p+4*j+3}], v[{a}:{a+15}]")
        e("s_nop 15\ns_nop 3")
    if kind=='out':
        loop(True)
        e("v_add_u32 v16, s37, v9\nv_mul_u32_u24 v16, 1792, v16")
        e(f"s_mul_i32 s39, s26, 896\ns_add_u32 s39, s39, s36\nv_lshlrev_b32 v17, 3, v11\nv_add3_u32 v16, v16, v17, s39")
        for j in range(1):
            for g in range(4):
                a=ACC[j]+4*g
                e(f"v_cvt_pk_bf16_f32 v20, v{a}, v{a+1}\nv_cvt_pk_bf16_f32 v21, v{a+2}, v{a+3}")
                e(f"global_store_dwordx2 v16, v[20:21], s[16:17] offset:{j*64+g*16}")
                e("s_nop 1")
    else:
        e(f"s_cmp_ge_u32 s24, 14\ns_cbranch_scc1 {name}_v")
        loop(True)
        e("s_cmp_ge_u32 s24, 7\ns_cselect_b32 s40, 448, 0")
        e(f"s_cselect_b32 s41, {KOFF}, {QOFF}\ns_cselect_b32 s42, 1.0, {f2u(C_SCALE)}\ns_sub_u32 s40, s33, s40")
        e(f"s_lshl_b32 s43, s26, 21\ns_add_u32 s41, s41, s43\ns_lshr_b32 s43, s37, 5\ns_lshl_b32 s43, s43, 11\ns_add_u32 s41, s41, s43")
        e("s_add_u32 s44, s20, s41\ns_addc_u32 s45, s21, 0")
        e("v_lshlrev_b32 v16, 4, v9")
        e("v_lshlrev_b32 v17, 2, v11\nv_add_u32 v17, s40, v17")
        e("v_mov_b32 v26, 0\nv_mov_b32 v27, 0")
        for j in range(1):
            for g in range(4):
                a=ACC[j]+4*g
                e(f"v_add_u32 v18, {32*j+8*g}, v17\nv_mul_u32_u24 v19, 2341, v18\nv_lshrrev_b32 v19, 16, v19")
                e("v_mul_u32_u24 v20, 28, v19\nv_sub_u32 v20, v18, v20")
                e("v_lshlrev_b32 v21, 17, v19\nv_lshrrev_b32 v22, 3, v20\nv_lshlrev_b32 v22, 9, v22\nv_and_b32 v23, 7, v20\nv_lshlrev_b32 v23, 1, v23")
                e("v_add3_u32 v21, v21, v22, v23\nv_add_u32 v21, v21, v16")
                for i in range(4): e(f"v_mul_f32 v{a+i}, s42, v{a+i}")
                e(f"v_cvt_pk_bf16_f32 v24, v{a}, v{a+1}\nv_cvt_pk_bf16_f32 v25, v{a+2}, v{a+3}")
                e("v_cmp_eq_u32 vcc, 24, v20\ns_and_saveexec_b64 s[46:47], vcc")
                e("global_store_dwordx4 v21, v[24:27], s[44:45]")
                e("s_andn2_b64 exec, s[46:47], exec")
                e("global_store_dwordx2 v21, v[24:25], s[44:45]")
                e("s_mov_b64 exec, s[46:47]\ns_nop 1")
        e(f"s_branch {name}_end")
        e(f"{name}_v:")
        loop(False)
        e(f"s_lshl_b32 s43, s26, 21\ns_add_u32 s41, s43, {VOFF}\ns_lshr_b32 s43, s37, 5\ns_lshl_b32 s43, s43, 11\ns_add_u32 s41, s41, s43")
        e("s_add_u32 s44, s20, s41\ns_addc_u32 s45, s21, 0")
        e("s_sub_u32 s40, s33, 896")
        for j in range(1):
            e(f"v_add_u32 v18, s40, v9\nv_add_u32 v18, {32*j}, v18\nv_mul_u32_u24 v19, 2341, v18\nv_lshrrev_b32 v19, 16, v19")
            e("v_mul_u32_u24 v20, 28, v19\nv_sub_u32 v20, v18, v20")
            e("v_lshlrev_b32 v21, 17, v19\nv_lshlrev_b32 v22, 4, v20\nv_lshlrev_b32 v23, 9, v11\nv_add3_u32 v21, v21, v22, v23")
            for gp in range(2):
                a=ACC[j]+8*gp
                for i in range(4): e(f"v_cvt_pk_bf16_f32 v{24+i}, v{a+2*i}, v{a+2*i+1}")
                e(f"global_store_dwordx4 v21, v[24:27], s[44:45] offset:{gp*1024}")
                e("s_nop 1")
        e("s_sub_u32 s48, s24, 14\ns_mul_i32 s49, s27, 7\ns_add_u32 s48, s48, s49\ns_cmp_ge_u32 s48, 16")
        e(f"s_cbranch_scc1 {name}_end")
        e(f"s_lshl_b32 s43, s26, 21\ns_add_u32 s41, s43, {VOFF}\ns_lshl_b32 s43, s48, 17\ns_add_u32 s41, s41, s43\ns_lshl_b32 s43, s25, 12\ns_add_u32 s41, s41, s43\ns_mov_b64 exec, 0xffffffff")
        e("s_add_u32 s44, s20, s41\ns_addc_u32 s45, s21, 0")
        e("v_lshrrev_b32 v18, 3, v2\nv_lshlrev_b32 v18, 10, v18")
        e("v_lshrrev_b32 v19, 2, v2\nv_and_b32 v19, 1, v19\nv_lshlrev_b32 v19, 9, v19")
        e("v_and_b32 v20, 3, v2\nv_add_u32 v21, 28, v20\nv_lshlrev_b32 v21, 4, v21\nv_add3_u32 v18, v18, v19, v21")
        e("v_cmp_eq_u32 vcc, 0, v20\nv_mov_b32 v22, 0x3f803f80\ns_nop 1\nv_cndmask_b32 v24, 0, v22, vcc\nv_mov_b32 v25, v24\nv_mov_b32 v26, v24\nv_mov_b32 v27, v24")
        e("global_store_dwordx4 v18, v[24:27], s[44:45]")
    e(f"{name}_end:\ns_endpgm")

def attn():
    name="attn_kernel"
    e(f".globl {name}\n.p2align 8\n.type {name},@function\n{name}:")
    e(f"s_cmp_ge_u32 s2, 512\ns_cbranch_scc1 {name}_end")
    e("s_load_dwordx2 s[20:21], s[0:1], 64")
    e("s_and_b32 s3, s2, 7\ns_lshr_b32 s4, s2, 3\ns_and_b32 s5, s4, 3\ns_lshl_b32 s3, s3, 2\ns_add_u32 s3, s3, s5\ns_lshr_b32 s4, s4, 2")
    e("v_lshrrev_b32 v1, 6, v0\nv_and_b32 v2, 63, v0\ns_nop 0\nv_readfirstlane_b32 s5, v1")
    e("s_lshl_b32 s6, s4, 2\ns_add_u32 s6, s6, s5")
    e("s_lshl_b32 s7, s3, 17")
    e("s_waitcnt lgkmcnt(0)")
    e("s_lshl_b32 s8, s6, 11\ns_add_u32 s8, s8, s7\ns_add_u32 s10, s20, s8\ns_addc_u32 s11, s21, 0")
    e(f"s_add_u32 s8, s7, {KOFF}\ns_add_u32 s12, s20, s8\ns_addc_u32 s13, s21, 0")
    e(f"s_add_u32 s8, s7, {VOFF}\ns_add_u32 s14, s20, s8\ns_addc_u32 s15, s21, 0")
    e("v_lshlrev_b32 v3, 4, v2")
    e("global_load_dwordx4 v[8:11], v3, s[10:11]\nglobal_load_dwordx4 v[12:15], v3, s[10:11] offset:1024")
    e("s_lshl_b32 s16, s5, 11\nv_add_u32 v4, s16, v3")
    S=(32,48); O=64; NM=80; KF=(96,104); VF=(112,120); P=16
    def dma(buf):
        e(f"s_add_u32 s17, {buf}, s16\ns_mov_b32 m0, s17\ns_nop 0")
        e("global_load_lds_dwordx4 v4, s[12:13]\nglobal_load_lds_dwordx4 v4, s[12:13] offset:1024")
        e("s_add_u32 s17, s17, 8192\ns_mov_b32 m0, s17\ns_nop 0")
        e("global_load_lds_dwordx4 v4, s[14:15]\nglobal_load_lds_dwordx4 v4, s[14:15] offset:1024")
        e("v_add_u32 v4, 8192, v4")
    e("s_mov_b32 s18, 0\ns_mov_b32 s19, 16384")
    dma("s18"); dma("s19")
    for i in range(16): e(f"v_mov_b32 v{O+i}, 0\nv_mov_b32 v{NM+i}, 0")
    e("v_mov_b32 v5, 0xff800000\nv_mov_b32 v6, 0xff800000")
    e("s_waitcnt vmcnt(4)\ns_barrier")
    def rdK(t,p):
        for d in range(2): e(f"ds_read_b128 v[{KF[p]+4*d}:{KF[p]+4*d+3}], v3 offset:{t*2048+d*1024}")
    def rdV(t,p):
        for d in range(2): e(f"ds_read_b128 v[{VF[p]+4*d}:{VF[p]+4*d+3}], v3 offset:{8192+t*2048+d*1024}")
    def A(p):
        s=S[p];k=KF[p]
        e(f"v_mfma_f32_32x32x16_bf16 v[{s}:{s+15}], v[{k}:{k+3}], v[8:11], v[{NM}:{NM+15}]")
        e(f"v_mfma_f32_32x32x16_bf16 v[{s}:{s+15}], v[{k+4}:{k+7}], v[12:15], v[{s}:{s+15}]")
    rdK(0,0); rdV(0,0)
    e("s_waitcnt lgkmcnt(0)"); A(0)
    e("s_nop 15\ns_mov_b32 s22, 0")
    rare=[]
    def body(last,tag):
        for t in range(4):
            p=t&1; s=S[p]; nxt = not(last and t==3)
            if t==3 and not last:
                e("s_waitcnt vmcnt(0) lgkmcnt(0)\ns_barrier")
                e(f"s_cmp_ge_u32 s22, 14\ns_cbranch_scc1 {tag}_nodma")
                dma("s18")
                e(f"{tag}_nodma:")
                e("s_xor_b32 s18, s18, 16384\nv_xor_b32 v3, 16384, v3")
            if nxt: rdK((t+1)&3,p^1); rdV((t+1)&3,p^1)
            e(f"v_max3_f32 v7, v{s}, v{s+1}, v{s+2}")
            for i in range(3,15,2): e(f"v_max3_f32 v7, v7, v{s+i}, v{s+i+1}")
            e(f"v_max_f32 v7, v7, v{s+15}")
            e(f"v_cmp_gt_f32 vcc, v7, v5\ns_cbranch_vccnz {tag}_rare{t}\n{tag}_back{t}:")
            for i in range(8): e(f"v_exp_f32 v{s+i}, v{s+i}")
            if nxt:
                e("s_waitcnt lgkmcnt(2)"); A(p^1)
            for i in range(8,16): e(f"v_exp_f32 v{s+i}, v{s+i}")
            for i in range(8): e(f"v_cvt_pk_bf16_f32 v{P+i}, v{s+2*i}, v{s+2*i+1}")
            e("s_nop 1")
            if not nxt: e("s_waitcnt lgkmcnt(0)")
            v=VF[p]
            e(f"v_mfma_f32_32x32x16_bf16 v[{O}:{O+15}], v[{v}:{v+3}], v[{P}:{P+3}], v[{O}:{O+15}]")
            e(f"v_mfma_f32_32x32x16_bf16 v[{O}:{O+15}], v[{v+4}:{v+7}], v[{P+4}:{P+7}], v[{O}:{O+15}]")
            rare.append((tag,t,s))
    e("attn_loop:")
    body(False,"aL")
    e("s_add_u32 s22, s22, 1\ns_cmp_lt_u32 s22, 15\ns_cbranch_scc1 attn_loop")
    body(True,"aF")
    e("s_nop 15\ns_nop 3")
    e(f"v_mov_b32 v24, v{O+12}\nv_mov_b32 v25, v{O+12}\ns_nop 1\nv_permlane32_swap_b32 v24, v25\nv_rcp_f32 v25, v25\ns_nop 0")
    e("s_and_b32 s23, s3, 15\ns_lshr_b32 s24, s3, 4")
    e(f"s_mul_i32 s24, s24, {2048*448*2}\ns_mul_i32 s23, s23, 56\ns_add_u32 s24, s24, s23\ns_add_u32 s24, s24, {OOFF}\ns_add_u32 s26, s20, s24\ns_addc_u32 s27, s21, 0")
    e("s_lshl_b32 s25, s6, 5\nv_and_b32 v26, 31, v2\nv_add_u32 v26, s25, v26\nv_mul_u32_u24 v26, 896, v26\nv_lshrrev_b32 v27, 5, v2\nv_lshlrev_b32 v27, 3, v27\nv_add_u32 v26, v26, v27")
    for g in range(4):
        a=O+4*g
        for i in range(4): e(f"v_mul_f32 v{a+i}, v25, v{a+i}")
        e(f"v_cvt_pk_bf16_f32 v28, v{a}, v{a+1}\nv_cvt_pk_bf16_f32 v29, v{a+2}, v{a+3}")
        if g==3: e("s_mov_b64 exec, 0xffffffff")
        e(f"global_store_dwordx2 v26, v[28:29], s[26:27] offset:{g*16}\ns_nop 1")
    e(f"{name}_end:\ns_endpgm")
    for tag,t,s in rare:
        e(f"{tag}_rare{t}:\ns_nop 15")
        e("v_mov_b32 v24, v7\nv_mov_b32 v25, v7\ns_nop 1\nv_permlane32_swap_b32 v24, v25\nv_max_f32 v24, v24, v25\nv_max_f32 v24, v24, v6")
        e("v_mov_b32 v6, 0\nv_mov_b32 v5, 0x41000000\nv_max_f32 v25, 0, v24\nv_exp_f32 v25, -v25\ns_nop 0")
        for i in range(16): e(f"v_mul_f32 v{O+i}, v25, v{O+i}\nv_sub_f32 v{s+i}, v{s+i}, v24\nv_sub_f32 v{NM+i}, v{NM+i}, v24")
        e(f"s_nop 1\ns_branch {tag}_back{t}")

gemm("qkv_kernel",21,1344,'qkv')
attn()
gemm("oproj_kernel",7,448,'out')
e('.section .rodata,"a"')
for k,nv in (("qkv_kernel",256),("attn_kernel",128),("oproj_kernel",256)):
    e(f""".p2align 6
.amdhsa_kernel {k}
  .amdhsa_next_free_vgpr {nv}
  .amdhsa_next_free_sgpr 64
  .amdhsa_accum_offset {nv}
  .amdhsa_group_segment_fixed_size 0
  .amdhsa_kernarg_size 72
  .amdhsa_user_sgpr_count 2
  .amdhsa_user_sgpr_kernarg_segment_ptr 1
  .amdhsa_system_sgpr_workgroup_id_x 1
.end_amdhsa_kernel""")
open('cdna_kernels/%s.s'%NAME,'w').write('\n'.join(L)+'\n')
```
